```python
import torch

def _softmax(x, axis=-1):
    return torch.softmax(x, dim=axis)
def _gelu(x):
    return torch.nn.functional.gelu(x, approximate="tanh")
def _silu(x):
    return torch.nn.functional.silu(x)
def _sigmoid(x):
    return torch.sigmoid(x)
def _layernorm(x, axis=-1, eps=1e-5):
    m = x.mean(dim=axis, keepdim=True)
    v = x.var(dim=axis, keepdim=True, unbiased=False)
    return (x - m) / torch.sqrt(v + eps)
def _scatter_add(tgt, idx, src, axis=0):
    return tgt.clone().index_add_(axis, idx, src)
def _segment_sum(src, seg, n):
    out = torch.zeros((n,) + src.shape[1:], dtype=src.dtype)
    return out.index_add_(0, seg, src)
def _pad(x, pw):
    flat = tuple(v for pair in reversed(pw) for v in pair)
    return torch.nn.functional.pad(x, flat)

kernel_name = 'sequential_preLN__sliding_local_dilated__geglu_ffn__prompt'

def setup_inputs():

    _w = (lambda a: (lambda t: t.to(torch.bfloat16) if t.is_floating_point() else t)(torch.as_tensor(a)))
    def _A_setup():
        B, S, D = 1, 2048, 512
        return {
            "x": _w((lambda *s: torch.randn(*s, dtype=torch.bfloat16) * 0.05)(B, S, D)),
            "wqkv": _w((lambda *s: torch.randn(*s, dtype=torch.bfloat16) * 0.05)(D, 3 * D)),
            "wo": _w((lambda *s: torch.randn(*s, dtype=torch.bfloat16) * 0.05)(D, D)),
        }
    _A_in = _A_setup()

    def _B_setup():
        B, S, D, F = 1, 2048, 512, 1376
        return {
            "x": _w((lambda *s: torch.randn(*s, dtype=torch.bfloat16) * 0.05)(B, S, D)),
            "w_gate": _w((lambda *s: torch.randn(*s, dtype=torch.bfloat16) * 0.05)(D, F)),
            "w_up": _w((lambda *s: torch.randn(*s, dtype=torch.bfloat16) * 0.05)(D, F)),
            "w_down": _w((lambda *s: torch.randn(*s, dtype=torch.bfloat16) * 0.05)(F, D)),
        }
    _B_in = _B_setup()

    return {
        "A_x": _A_in["x"],
        "A_wqkv": _A_in["wqkv"],
        "A_wo": _A_in["wo"],
        "B_x": _B_in["x"],
        "B_w_gate": _B_in["w_gate"],
        "B_w_up": _B_in["w_up"],
        "B_w_down": _B_in["w_down"],
    }

def reference(A_x, A_wqkv, A_wo, B_x, B_w_gate, B_w_up, B_w_down):
    def _A_ref(x, wqkv, wo):
        B, S, D = x.shape
        H = 32; Dh = D // H
        W, dil = 8, 2
        qkv = (lambda x, *d: x.permute(*d))((x @ wqkv).reshape(B, S, 3, H, Dh), 2, 0, 3, 1, 4)
        q, k, v = qkv[0], qkv[1], qkv[2]
        scale = Dh ** -0.5
        pos = torch.arange(S)
        off = torch.arange(W) * dil
        idx = pos[:, None] - off[None, :]
        mask = idx >= 0
        idx_c = torch.where(mask, idx, 0).reshape(-1)
        kg = k[:, :, idx_c, :].reshape(B, H, S, W, Dh)
        vg = v[:, :, idx_c, :].reshape(B, H, S, W, Dh)
        logits = torch.einsum("bhsd,bhswd->bhsw", q, kg) * scale
        logits = torch.where(mask[None, None, :, :], logits, -1e9)
        attn = _softmax(logits, axis=-1)
        o = torch.einsum("bhsw,bhswd->bhsd", attn, vg)
        return (lambda x, *d: x.permute(*d))(o, 0, 2, 1, 3).reshape(B, S, D) @ wo

    def _B_ref(x, w_gate, w_up, w_down):
        return (_gelu(x @ w_gate) * (x @ w_up)) @ w_down

    x = A_x
    h = x + _A_ref(_layernorm(x, axis=-1), A_wqkv, A_wo)
    h2 = h + _B_ref(_layernorm(h, axis=-1), B_w_gate, B_w_up, B_w_down)
    return h2
```

```python
import re

TRANS = ("v_exp_f32", "v_log_f32", "v_rcp_f32", "v_rsq_f32", "v_sqrt_f32", "v_sin_f32", "v_cos_f32")

def expand(op):
    op = op.strip()
    if op.startswith("-"): op = op[1:]
    m = re.fullmatch(r"abs\((.*)\)", op)
    if m: op = m.group(1)
    m = re.fullmatch(r"([vas])\[(\d+):(\d+)\]", op)
    if m: return [f"{m.group(1)}{i}" for i in range(int(m.group(2)), int(m.group(3)) + 1)]
    if re.fullmatch(r"[vas]\d+", op): return [op]
    if op in ("vcc", "exec", "m0"): return [op]
    if op in ("vcc_lo", "vcc_hi"): return ["vcc"]
    if op in ("exec_lo", "exec_hi"): return ["exec"]
    return []

class Ins:
    def __init__(self, text):
        self.text = text
        t = text.split(";")[0].strip()
        self.label = t.endswith(":")
        self.kind = "other"; self.rd = []; self.wr = []; self.passes = 0; self.srcc = []; self.ab = []
        self.states = 1
        if self.label or not t or t.startswith("."):
            self.kind = "label" if self.label else "dir"; self.states = 0; self.mn = ""; return
        parts = t.split(None, 1)
        mn = self.mn = parts[0]
        rest = parts[1] if len(parts) > 1 else ""
        ops = [o.strip() for o in re.split(r",(?![^\[]*\])(?![^\(]*\))", rest)] if rest else []
        mods = ""
        if ops:
            last = ops[-1].split(None, 1)
            ops[-1] = last[0]
            mods = last[1] if len(last) > 1 else ""
        self.mods = mods
        R = [expand(o) for o in ops]
        flat = lambda l: [r for x in l for r in x]
        if mn == "s_nop":
            self.kind = "nop"; self.states = int(ops[0]) + 1
        elif mn.startswith("v_mfma"):
            self.kind = "mfma"
            self.passes = 8 if "32x32" in mn else 4
            self.wr = R[0]; self.ab = R[1] + R[2]; self.srcc = R[3]; self.rd = self.ab + self.srcc
        elif mn.startswith("v_cmp"):
            self.kind = "valu"; self.wr = R[0]; self.rd = flat(R[1:])
        elif mn.startswith("v_permlane"):
            self.kind = "valu"; self.wr = R[0] + R[1]; self.rd = R[0] + R[1]
        elif mn.startswith("v_"):
            self.kind = "valu"; self.wr = list(R[0]); self.rd = flat(R[1:])
            if mn.startswith(("v_fmac", "v_dot2c", "v_pk_fmac")) or "_dpp" in mn: self.rd += R[0]
            if mn.startswith(("v_add_co", "v_sub_co", "v_addc_co", "v_subb_co")):
                self.wr += R[1]; self.rd = flat(R[2:])
        elif mn.startswith("ds_read") or mn.startswith("ds_bpermute"):
            self.kind = "ds"; self.wr = R[0]; self.rd = flat(R[1:])
        elif mn.startswith("ds_write"):
            self.kind = "ds"; self.rd = flat(R)
        elif mn.startswith(("buffer_load", "global_load")):
            self.kind = "vmem"
            if re.search(r"\blds\b", mods): self.rd = flat(R) + ["m0"]
            else: self.wr = R[0]; self.rd = flat(R[1:])
        elif mn.startswith(("buffer_store", "global_store", "buffer_atomic")):
            self.kind = "vmem"; self.rd = flat(R); self.sdata = R[0]
        elif mn.startswith(("buffer_wbl2", "buffer_inv")):
            self.kind = "vmem"
        elif mn.startswith(("s_cmp", "s_bitcmp")):
            self.kind = "salu"; self.rd = flat(R)
        elif mn.startswith(("s_waitcnt", "s_barrier", "s_branch", "s_cbranch", "s_endpgm", "s_sleep", "s_setprio")):
            self.kind = "ctl"
        elif mn.startswith(("s_load", "s_memtime", "s_memrealtime", "s_buffer_load")):
            self.kind = "smem"; self.wr = R[0]; self.rd = flat(R[1:])
        elif mn.startswith("s_"):
            self.kind = "salu"; self.wr = list(R[0]) if R else []; self.rd = flat(R[1:])
            if "saveexec" in mn: self.wr += ["exec"]; self.rd += ["exec"]
        else:
            raise ValueError("unknown instr " + text)
        self.trans = mn.replace("_e32", "").replace("_e64", "") in TRANS
        self.dpp = "_dpp" in mn

def need(p, c):
    n = 0
    pw, cr, cw = set(p.wr), set(c.rd), set(c.wr)
    if p.kind == "valu":
        vw = {r for r in pw if r[0] in "va" and r != "vcc"}
        sw = pw - vw
        if c.kind == "mfma" and vw & cr: n = max(n, 2)
        if c.kind == "valu":
            if (c.mn.startswith("v_permlane") or c.dpp) and vw & cr: n = max(n, 2)
            if c.mn.startswith(("v_readlane", "v_readfirstlane")) and vw & cr: n = max(n, 1)
            if p.trans and vw & cr: n = max(n, 1)
            if sw & cr: n = max(n, 4 if c.mn.startswith(("v_readlane", "v_writelane")) else 2)
        if c.kind == "vmem" and sw & cr: n = max(n, 5)
        if c.kind in ("salu", "smem") and sw & cr: n = max(n, 1)
        if c.kind == "ctl" and "vcc" in sw and "vcc" in c.mn: n = max(n, 1)
        if p.trans and c.kind in ("ds", "vmem") and vw & cr: n = max(n, 1)
    if p.kind == "mfma":
        big = p.passes == 8
        if c.kind == "mfma":
            if pw & set(c.ab): n = max(n, 12 if big else 8)
            if pw & set(c.srcc):
                if not (c.srcc == p.wr and c.passes == p.passes): n = max(n, 10 if big else 6)
            elif pw & cw: n = max(n, 10 if big else 6)
        elif c.kind in ("valu", "ds", "vmem"):
            if pw & (cr | cw): n = max(n, 12 if big else 8)
            if c.kind == "valu" and set(p.srcc) & cw: n = max(n, 7 if big else 3)
    if p.kind == "salu" and "m0" in pw and c.kind == "vmem" and "m0" in cr: n = max(n, 1)
    if p.kind == "vmem" and hasattr(p, "sdata") and len(p.sdata) >= 3 and set(p.sdata) & cw: n = max(n, 2)
    if p.kind == "ds" and p.mn.startswith("ds_write") and c.kind == "valu" and set(p.rd) & cw: n = max(n, 1)
    return n

class Asm:
    def __init__(self):
        self.ins = []
        self.tail = []
        self.vmq = []
        self.vm_done = 0
        self.lq = []; self.l_done = 0
        self.nlabel = 0
    def e(self, text):
        for line in text.split("\n"):
            line = line.strip()
            if line: self.ins.append(Ins(line))
    def vm(self, text, tag=None, counted=True):
        if counted and len(self.vmq) - self.vm_done >= 62:
            self.vm_done = len(self.vmq) - 56
            self.e("s_waitcnt vmcnt(56)")
        self.e(text)
        if counted: self.vmq.append(tag)
        return len(self.vmq) - 1
    def vm_n(self, idx):
        return len(self.vmq) - 1 - idx
    def last_vm(self, tags):
        if not isinstance(tags, (list, tuple, set)): tags = [tags]
        tags = set(tags)
        idx = [i for i, t in enumerate(self.vmq) if t in tags]
        missing = tags - set(self.vmq)
        assert not missing, f"vm tags never issued: {missing}"
        return max(idx)
    def wait(self, vm=None, lg=None):
        parts = []
        if vm is not None:
            i = len(self.vmq) - 1 if vm == "all" else self.last_vm(vm)
            if i >= self.vm_done or vm == "all":
                parts.append(f"vmcnt({self.vm_n(i)})"); self.vm_done = max(self.vm_done, i + 1)
        if lg is not None:
            if lg == "all": i = len(self.lq) - 1
            else:
                tags = set(lg) if isinstance(lg, (list, tuple, set)) else {lg}
                assert tags <= set(self.lq), f"lds tags never issued {tags - set(self.lq)}"
                i = max(k for k, t in enumerate(self.lq) if t in tags)
            if i >= self.l_done or lg == "all":
                n = len(self.lq) - 1 - i
                assert n <= 15
                parts.append(f"lgkmcnt({n})"); self.l_done = max(self.l_done, i + 1)
        if parts: self.e("s_waitcnt " + " ".join(parts))
    def ds(self, text, tag=None):
        if len(self.lq) - self.l_done >= 15:
            self.l_done = len(self.lq) - 12
            self.e("s_waitcnt lgkmcnt(12)")
        self.e(text); self.lq.append(tag)
    def label(self, base):
        self.nlabel += 1
        return f"L_{base}_{self.nlabel}"
    def pad(self, ins):
        out = []; npad = 0
        for c in ins:
            if c.states == 0: out.append(c); continue
            dist = 0; req = 0
            for p in reversed(out):
                if dist >= 13: break
                if p.states == 0: continue
                n = need(p, c)
                if n > dist: req = max(req, n - dist)
                dist += p.states
            if req:
                out.append(Ins(f"s_nop {req - 1}")); npad += req
            out.append(c)
        return out, npad
    def text(self):
        out, npad = self.pad(self.ins)
        self.npad = npad
        lines = [("" if i.label else "    ") + i.text for i in out]
        t = []
        for blk in self.tail:
            o, _ = self.pad([Ins(l.strip()) for l in blk.split("\n") if l.strip()])
            t += [("" if i.label else "    ") + i.text for i in o]
        return "\n".join(lines), "\n".join(t)

def merge(main, fill, start=0, end=None):
    end = len(main) if end is None else end
    n = end - start
    out = []; k = 0
    for i, m in enumerate(main):
        out.append(m)
        if start <= i < end:
            upto = (len(fill) * (i - start + 1) + n - 1) // n
            while k < upto: out.append(fill[k]); k += 1
    out += fill[k:]
    return out
```

```python
import sys, math, struct
from asmb import Asm, merge

NAME = "sequential_preLN__sliding_local_dilated__geglu_ffn__prompt"
def f2u(x): return struct.unpack("<I", struct.pack("<f", x))[0]

WS_O, WS_HC, WS_ACT, WS_ST, WS_FL = 0x0, 0x20000, 0x40000, 0xA0000, 0xA4000
WS_SG, WS_XCD = 0xA8000, 0x200000
WS_WB = 0x1000000
WS_STAMP = 0x1100000
WS_SIZE = 0x2000000
OOB = 0x7ff00000

DEF = dict(stamps=0, stop=99, ndefer=8, touch_code=1, touch_p1=1, touch_late=1, force_slow=0,
           pf_c6=8, pf_c7=8, pf_epi=8, pf_h1a=4, pf_h1b=0, pf_p2=0, pf_h2a=6, pf_h2b=0, outsc1=0, wbl2=0, span=4096)

class Regs:
    def __init__(self, n, start=0):
        self.free = [True] * n
        for i in range(start): self.free[i] = False
        self.hi = start
    def alloc(self, n=1, al=None):
        al = al or (1 if n == 1 else 2 if n == 2 else 4)
        for b in range(0, len(self.free) - n + 1, al):
            if all(self.free[b:b + n]):
                for i in range(b, b + n): self.free[i] = False
                self.hi = max(self.hi, b + n)
                return b
        raise RuntimeError("out of registers")
    def rel(self, b, n=1):
        for i in range(b, b + n):
            assert not self.free[i]
            self.free[i] = True

def v(b, n=1): return f"v{b}" if n == 1 else f"v[{b}:{b+n-1}]"
def a_(b, n=1): return f"a{b}" if n == 1 else f"a[{b}:{b+n-1}]"
def s(b, n=1): return f"s{b}" if n == 1 else f"s[{b}:{b+n-1}]"

def gen(**kw):
    P = dict(DEF); P.update(kw)
    A = Asm(); e = A.e
    V = Regs(256, 1); S = Regs(100, 3)
    sX, sWQ, sWO, sGU, sWD, sOUT, sDBG, sWS = [S.alloc(4) for _ in range(8)]
    sWU = S.alloc(2); sT2 = S.alloc(2); sExH = S.alloc(2)
    sW, sW1K, sJ, sM, sRB, sSB, sR0, sBase, sT, sTb, sXo, sWo, sSo, sSlow, sXcc, sSpin = [S.alloc() for _ in range(16)]
    sM1, sM2, sM3, sStatEx = [S.alloc(2) for _ in range(4)]
    nst = [0]
    sStamp = S.alloc(22, 2) if P["stamps"] else None
    sTm = S.alloc(2) if P["stamps"] else None
    stamp_names = []
    def stamp(name):
        if not P["stamps"]: return
        i = nst[0]; nst[0] += 1
        assert i < 22
        stamp_names.append(name)
        A.wait(lg="all")
        e(f"s_memtime {s(sTm, 2)}")
        e("s_waitcnt lgkmcnt(0)")
        e(f"s_mov_b32 {s(sStamp + i)}, {s(sTm)}")
    MISC = 39 * 4096
    XS = [[0, 1, 2, 3, 4], [5, 6, 7, 8, 9]]
    WSL = [list(range(10, 16)), list(range(16, 22)), list(range(22, 28))]
    free_pages = list(range(28, 39))
    def palloc():
        return free_pages.pop(0)
    def dma(page, vaddr, srd, soff, imm=0, flags="", tag=None, wreg=None):
        c = page * 4096 - imm
        assert c >= 0
        e(f"s_add_u32 m0, {s(sW1K if wreg is None else wreg)}, {c}")
        A.vm(f"buffer_load_dwordx4 {v(vaddr)}, {s(srd,4)}, {soff} offen" + (f" offset:{imm}" if imm else "") + (f" {flags}" if flags else "") + " lds", tag)
    class Win:
        def __init__(self, base, wins):
            self.r = {}
            for w in wins:
                if w == 0: self.r[0] = base
                else:
                    r = V.alloc(); e(f"v_add_u32 {v(r)}, {w*65536}, {v(base)}"); self.r[w] = r
        def at(self, off): return f"{v(self.r[off >> 16])} offset:{off & 0xffff}"
        def rel(self):
            for r in self.r.values(): V.rel(r)

    if P["stamps"]:
        nst[0] = 1; stamp_names.append("start"); e(f"s_memtime {s(sStamp,2)}")
    e(f"s_load_dwordx2 {s(sX,2)}, s[0:1], 0")
    e(f"s_load_dwordx2 {s(sWQ,2)}, s[0:1], 8")
    e(f"s_load_dwordx2 {s(sWO,2)}, s[0:1], 16")
    e(f"s_load_dwordx2 {s(sWS,2)}, s[0:1], 72")
    e(f"s_load_dwordx2 {s(sGU,2)}, s[0:1], 32")
    e(f"s_load_dwordx2 {s(sWU,2)}, s[0:1], 40")
    e(f"s_load_dwordx2 {s(sWD,2)}, s[0:1], 48")
    e(f"s_load_dwordx2 {s(sOUT,2)}, s[0:1], 56")
    e(f"s_load_dwordx2 {s(sDBG,2)}, s[0:1], 64")
    e("s_cmp_ge_u32 s2, 256")
    e("s_cbranch_scc1 L_end")
    t0, t1, t2, t3 = [V.alloc() for _ in range(4)]
    vL = 0
    e(f"v_lshrrev_b32 {v(t0)}, 6, v0")
    e(f"v_and_b32 v0, 63, v0")
    e(f"v_readfirstlane_b32 {s(sW)}, {v(t0)}")
    e(f"s_lshr_b32 {s(sT)}, s2, 3")
    tcode = V.alloc()
    if P["touch_code"]:
        e(f"s_getpc_b64 {s(sT2,2)}")
        e(f"s_lshl2_add_u32 {s(sTb)}, {s(sT)}, {s(sW)}")
        e(f"s_lshl_b32 {s(sTb)}, {s(sTb)}, 8")
        e(f"v_lshl_add_u32 {v(t0)}, v0, 7, {s(sTb)}")
        e(f"v_min_u32 {v(t0)}, CODE_SPAN, {v(t0)}")
        e("s_mov_b64 exec, 3")
        A.vm(f"global_load_dword {v(tcode)}, {v(t0)}, {s(sT2,2)}", "tcode")
        e("s_mov_b64 exec, -1")
    e(f"s_and_b32 {s(sM)}, {s(sT)}, 15")
    e(f"s_and_b32 {s(sJ)}, {s(sT)}, 7")
    e(f"s_lshr_b32 {s(sRB)}, {s(sM)}, 3")
    e(f"s_lshr_b32 {s(sT)}, {s(sT)}, 4")
    e(f"s_and_b32 {s(sTb)}, s2, 7")
    e(f"s_lshl1_add_u32 {s(sSB)}, {s(sTb)}, {s(sT)}")
    e(f"s_mul_i32 {s(sT)}, {s(sT)}, {WS_SG}")
    e(f"s_lshl_b32 {s(sTb)}, {s(sTb)}, 21")
    e(f"s_add_u32 {s(sBase)}, {s(sT)}, {s(sTb)}")
    e(f"s_lshl1_add_u32 {s(sR0)}, {s(sSB)}, {s(sRB)}")
    e(f"s_lshl_b32 {s(sR0)}, {s(sR0)}, 6")
    e(f"s_lshl_b32 {s(sW1K)}, {s(sW)}, 10")
    for srd, n in ((sX, 2097152), (sWQ, 1572864), (sWO, 524288), (sWS, WS_SIZE), (sGU, 1409024), (sWD, 1409024), (sOUT, 2097152), (sDBG, 256)):
        e(f"s_mov_b32 {s(srd+2)}, {n}")
        e(f"s_mov_b32 {s(srd+3)}, 0x20000")
    vX0, vX1, vXH, vWq = [V.alloc() for _ in range(4)]
    sHb, sCp = S.alloc(), S.alloc()
    e(f"s_and_b32 {s(sHb)}, {s(sW)}, 1")
    e(f"s_lshr_b32 {s(sCp)}, {s(sW)}, 1")
    e(f"v_lshrrev_b32 {v(t0)}, 3, v0")
    e(f"v_lshrrev_b32 {v(t1)}, 4, v0")
    e(f"s_lshl_b32 {s(sT)}, {s(sHb)}, 2")
    e(f"v_xor_b32 {v(t2)}, v0, {v(t1)}")
    e(f"v_and_b32 {v(t2)}, 7, {v(t2)}")
    e(f"v_xor_b32 {v(t2)}, {s(sT)}, {v(t2)}")
    e(f"s_lshl_b32 {s(sT)}, {s(sCp)}, 7")
    e(f"v_lshl_add_u32 {v(t2)}, {v(t2)}, 4, {s(sT)}")
    e(f"s_lshl4_add_u32 {s(sT)}, {s(sHb)}, {s(sR0)}")
    e(f"v_lshl_add_u32 {v(t3)}, {v(t0)}, 1, {s(sT)}")
    e(f"v_lshl_add_u32 {v(vX0)}, {v(t3)}, 10, {v(t2)}")
    e(f"v_add_u32 {v(vX1)}, 32768, {v(vX0)}")
    e(f"s_add_u32 {s(sT)}, {s(sR0)}, {s(sHb)}")
    e(f"s_sub_u32 {s(sT)}, {s(sT)}, 16")
    e(f"v_lshl_add_u32 {v(t3)}, {v(t0)}, 1, {s(sT)}")
    e(f"v_max_i32 {v(t3)}, 0, {v(t3)}")
    e(f"v_lshl_add_u32 {v(vXH)}, {v(t3)}, 10, {v(t2)}")
    vRowP = V.alloc()
    e(f"v_and_b32 {v(t2)}, 4, {v(t0)}")
    e(f"v_add_u32 {v(t2)}, {v(t2)}, {v(t0)}")
    e(f"s_lshl2_add_u32 {s(sT)}, {s(sCp)}, {s(sHb)}")
    e(f"s_lshl_b32 {s(sT)}, {s(sT)}, 2")
    e(f"v_add_u32 {v(vRowP)}, {s(sT)}, {v(t2)}")
    e(f"v_lshrrev_b32 {v(t2)}, 1, v0")
    e(f"v_xor_b32 {v(t2)}, {v(t2)}, {v(t1)}")
    e(f"v_and_b32 {v(t2)}, 3, {v(t2)}")
    e(f"v_and_b32 {v(t3)}, 1, v0")
    e(f"v_lshl_add_u32 {v(t2)}, {v(t2)}, 1, {v(t3)}")
    e(f"s_lshl_b32 {s(sT)}, {s(sJ)}, 7")
    e(f"v_lshl_add_u32 {v(t2)}, {v(t2)}, 4, {s(sT)}")
    e(f"v_mul_u32_u24 {v(t3)}, 3072, {v(vRowP)}")
    e(f"v_add_u32 {v(vWq)}, {v(t3)}, {v(t2)}")
    e(f"s_cmp_eq_u32 {s(sHb)}, 0")
    e(f"s_cselect_b32 {s(sExH)}, 0xffffff00, -1")
    e(f"s_mov_b32 {s(sExH+1)}, -1")
    e(f"s_lshr_b32 {s(sT)}, {s(sJ)}, 1")
    e(f"s_lshl_b32 {s(sXo)}, {s(sT)}, 8")
    e(f"s_mul_i32 {s(sWo)}, {s(sT)}, {128*3072}")
    ttch = V.alloc(4)
    vTa, vTb = V.alloc(), V.alloc()
    e(f"s_lshl2_add_u32 {s(sTb)}, s2, {s(sW)}")
    e(f"s_mul_i32 {s(sT)}, {s(sTb)}, {12*128}")
    e(f"v_lshl_add_u32 {v(vTa)}, v0, 7, {s(sT)}")
    e(f"s_mul_i32 {s(sT)}, {s(sTb)}, {11*128}")
    e(f"v_lshl_add_u32 {v(vTb)}, v0, 7, {s(sT)}")
    e("s_waitcnt lgkmcnt(0)")

    def x_dmas(n):
        pg = XS[n & 1]
        L = []
        for blk in range(4):
            p_, b_ = blk >> 1, blk & 1
            L.append(lambda blk=blk, p_=p_, b_=b_: dma(pg[blk], vX1 if b_ else vX0, sX, s(sXo), imm=1024 * p_, tag=f"X{n}"))
        def halo():
            e(f"s_add_u32 m0, {s(sW1K)}, {pg[4]*4096}")
            e(f"s_mov_b64 exec, {s(sExH,2)}")
            A.vm(f"buffer_load_dwordx4 {v(vXH)}, {s(sX,4)}, {s(sXo)} offen lds", f"X{n}")
            e("s_mov_b64 exec, -1")
            e(f"s_add_u32 {s(sXo)}, {s(sXo)}, 256")
            e(f"s_and_b32 {s(sXo)}, {s(sXo)}, 0x3ff")
        L.append(halo)
        return L
    def w_dmas(c):
        pg = WSL[c % 3]
        L = []
        for st in range(2):
            for mt in range(3):
                def f(st=st, mt=mt):
                    dma(pg[st*3+mt], vWq, sWQ, s(sWo), imm=1024 * mt, tag=f"W{c}")
                    if mt == 2:
                        e(f"s_add_u32 {s(sWo)}, {s(sWo)}, {32*3072}")
                        if st == 1 and c % 2 == 1:
                            e(f"s_cmp_eq_u32 {s(sWo)}, {512*3072}")
                            e(f"s_cselect_b32 {s(sWo)}, 0, {s(sWo)}")
                L.append(f)
        return L
    if P["touch_p1"]:
        e("s_mov_b64 exec, 0xfff")
        A.vm(f"buffer_load_dword {v(ttch)}, {v(vTa)}, {s(sWQ,4)}, 0 offen", "tp1")
        e("s_mov_b64 exec, -1")
    for f in x_dmas(0) + w_dmas(0): f()
    vWb = V.alloc(4)
    e(f"s_lshl1_add_u32 {s(sT)}, s2, {s(sHb)}")
    e(f"s_lshl_b32 {s(sT)}, {s(sT)}, 10")
    vL16 = V.alloc()
    e(f"v_lshlrev_b32 {v(vL16)}, 4, v0")
    A.vm(f"buffer_load_dwordx4 {v(vWb,4)}, {v(vL16)}, {s(sWO,4)}, {s(sT)} offen", "wbrow")
    vFp12, vFp3, vFc1, vFc2, vFc3, vOne = [V.alloc() for _ in range(6)]
    e(f"s_lshl1_add_u32 {s(sT)}, {s(sRB)}, {s(sHb)}")
    e(f"s_lshl_b32 {s(sT)}, {s(sT)}, 7")
    e(f"s_add_u32 {s(sT)}, {s(sT)}, {s(sBase)}")
    e(f"s_add_u32 {s(sT)}, {s(sT)}, {WS_FL}")
    e(f"v_and_b32 {v(t0)}, 15, v0")
    e(f"v_lshl_add_u32 {v(vFc3)}, {v(t0)}, 2, {s(sT)}")
    e(f"s_lshl1_add_u32 {s(sTb)}, {s(sJ)}, {s(sCp)}")
    e(f"s_lshl2_add_u32 {s(sT)}, {s(sTb)}, {s(sT)}")
    e(f"v_mov_b32 {v(vFp12)}, {s(sT)}")
    e(f"s_lshl1_add_u32 {s(sT)}, {s(sRB)}, {s(sCp)}")
    e(f"s_lshl_b32 {s(sT)}, {s(sT)}, 7")
    e(f"s_add_u32 {s(sT)}, {s(sT)}, {s(sBase)}")
    e(f"s_add_u32 {s(sT)}, {s(sT)}, {WS_FL}")
    e(f"v_lshl_add_u32 {v(vFc1)}, {v(t0)}, 2, {s(sT)}")
    e(f"s_lshl_b32 {s(sT)}, {s(sW)}, 7")
    e(f"s_add_u32 {s(sT)}, {s(sT)}, {s(sBase)}")
    e(f"s_add_u32 {s(sT)}, {s(sT)}, {WS_FL}")
    e(f"v_lshl_add_u32 {v(vFc2)}, {v(t0)}, 2, {s(sT)}")
    e(f"s_lshl2_add_u32 {s(sT)}, {s(sM)}, {s(sT)}")
    e(f"v_mov_b32 {v(vFp3)}, {s(sT)}")
    e(f"v_cmp_gt_u32 vcc, 2, v0")
    e(f"v_cndmask_b32 {v(t1)}, {v(vFp3)}, {v(vFp12)}, vcc")
    e(f"v_lshl_add_u32 {v(t1)}, v0, 9, {v(t1)}")
    e(f"v_mov_b32 {v(t2)}, 0")
    e(f"v_mov_b32 {v(vOne)}, 1")
    e("s_mov_b64 exec, 31")
    A.vm(f"buffer_store_dword {v(t2)}, {v(t1)}, {s(sWS,4)}, 0 offen sc1", "clr")
    e("s_mov_b64 exec, -1")
    for f in w_dmas(1): f()
    e(f"s_cmp_eq_u32 {s(sHb)}, 0")
    e(f"s_cselect_b32 {s(sGU)}, {s(sGU)}, {s(sWU)}")
    e(f"s_cselect_b32 {s(sGU+1)}, {s(sGU+1)}, {s(sWU+1)}")
    vOnes = V.alloc(4)
    for r in range(4): e(f"v_mov_b32 {v(vOnes+r)}, 0x3f803f80")
    e(f"v_and_b32 {v(t0)}, 7, v0")
    e(f"v_bfe_u32 {v(t1)}, v0, 3, 1")
    e(f"v_bfe_u32 {v(t2)}, v0, 4, 1")
    e(f"v_lshlrev_b32 {v(t0)}, 4, {v(t0)}")
    e(f"v_lshl_add_u32 {v(t0)}, {v(t1)}, 11, {v(t0)}")
    e(f"v_mul_u32_u24 {v(t2)}, {5*4096}, {v(t2)}")
    e(f"v_add_u32 {v(t0)}, {v(t0)}, {v(t2)}")
    A.ds(f"ds_write_b128 {v(t0)}, {v(vOnes,4)} offset:{XS[0][4]*4096}")
    vRA0, vRA1, vRS0, vRS1, vRB = [V.alloc() for _ in range(5)]
    vI, vG = V.alloc(), V.alloc()
    e(f"v_and_b32 {v(vI)}, 15, v0")
    e(f"v_lshrrev_b32 {v(vG)}, 4, v0")
    e(f"v_lshrrev_b32 {v(t0)}, 1, {v(vI)}")
    e(f"v_xor_b32 {v(t0)}, {v(t0)}, {v(vG)}")
    e(f"v_lshlrev_b32 {v(t0)}, 4, {v(t0)}")
    e(f"v_lshl_add_u32 {v(vRA0)}, {v(vI)}, 7, {v(t0)}")
    e(f"v_xor_b32 {v(vRA1)}, 64, {v(vRA0)}")
    e(f"s_lshl_b32 {s(sT)}, {s(sW)}, 12")
    e(f"v_add_u32 {v(vRS0)}, {s(sT)}, {v(vRA0)}")
    e(f"v_add_u32 {v(vRS1)}, {s(sT)}, {v(vRA1)}")
    e(f"v_bfe_u32 {v(t0)}, v0, 2, 3")
    e(f"v_lshrrev_b32 {v(t1)}, 1, {v(t0)}")
    e(f"v_xor_b32 {v(t1)}, {s(sW)}, {v(t1)}")
    e(f"v_lshlrev_b32 {v(t1)}, 5, {v(t1)}")
    e(f"v_lshl_add_u32 {v(t1)}, {v(t0)}, 7, {v(t1)}")
    e(f"v_and_b32 {v(t2)}, 3, v0")
    e(f"v_lshl_add_u32 {v(t1)}, {v(t2)}, 3, {v(t1)}")
    vH = V.alloc()
    e(f"v_lshrrev_b32 {v(vH)}, 5, v0")
    e(f"v_lshl_add_u32 {v(vRB)}, {v(vH)}, 11, {v(t1)}")
    WB = Win(vRB, [0, 1])
    vRX = V.alloc()
    e(f"v_lshrrev_b32 {v(t0)}, 1, {v(vI)}")
    e(f"s_lshl_b32 {s(sT)}, {s(sCp)}, 2")
    e(f"v_xor_b32 {v(t0)}, {s(sT)}, {v(t0)}")
    e(f"v_lshlrev_b32 {v(t0)}, 4, {v(t0)}")
    e(f"v_lshl_add_u32 {v(t0)}, {v(vI)}, 7, {v(t0)}")
    e(f"v_lshl_add_u32 {v(t0)}, {v(vH)}, 3, {v(t0)}")
    e(f"v_and_b32 {v(t1)}, 1, {v(vG)}")
    e(f"v_lshl_add_u32 {v(t0)}, {v(t1)}, 12, {v(t0)}")
    e(f"s_and_b32 {s(sT)}, {s(sJ)}, 1")
    e(f"s_lshl2_add_u32 {s(sT)}, {s(sHb)}, {s(sT)}")
    e(f"s_lshl_b32 {s(sT)}, {s(sT)}, 11")
    e(f"v_add_u32 {v(vRX)}, {s(sT)}, {v(t0)}")
    mC, mP, mH0, mH1 = [V.alloc(4) for _ in range(4)]
    mA = V.alloc(2)
    sNeg = S.alloc(); sHl = S.alloc()
    e(f"s_mov_b32 {s(sNeg)}, {f2u(-1e30):#x}")
    e(f"s_cmp_eq_u32 {s(sR0)}, 0")
    e(f"s_cselect_b32 {s(sHl)}, {s(sNeg)}, 0")
    e(f"v_mov_b32 {v(t3)}, {s(sNeg)}")
    e(f"v_mov_b32 {v(t2)}, {s(sHl)}")
    e(f"v_lshlrev_b32 {v(t0)}, 2, {v(vG)}")
    e(f"v_sub_u32 {v(t0)}, {v(vI)}, {v(t0)}")
    e(f"s_mov_b32 {s(sT2)}, -1")
    e(f"s_mov_b32 {s(sT2+1)}, 0")
    e(f"v_mov_b32 {v(mA)}, 0")
    e(f"v_mov_b32 {v(mA+1)}, 0")
    tm = V.alloc()
    for r in range(4):
        e(f"v_subrev_u32 {v(t1)}, {r}, {v(t0)}")
        e(f"v_cmp_lt_u32 vcc, 7, {v(t1)}")
        e(f"v_or_b32 {v(tm)}, {0xffff << (16*(r&1)):#x}, {v(mA + r//2)}")
        e(f"v_cndmask_b32 {v(mC+r)}, 0, {v(t3)}, vcc")
        e(f"v_cndmask_b32 {v(mA + r//2)}, {v(tm)}, {v(mA + r//2)}, vcc")
        e(f"v_cmp_lt_i32 vcc, -9, {v(t1)}")
        e(f"v_cndmask_b32 {v(mP+r)}, 0, {v(t3)}, vcc")
        e(f"v_cndmask_b32 {v(mH1+r)}, {v(t2)}, {v(t3)}, vcc")
        e(f"v_cmp_gt_i32 vcc, 0, {v(t1)}")
        e(f"s_and_b64 vcc, vcc, {s(sT2,2)}")
        e(f"v_cndmask_b32 {v(mH0+r)}, {v(t3)}, {v(t2)}, vcc")
    V.rel(tm)
    for sm, val in ((sM1, 0x22222222), (sM2, 0x44444444), (sM3, 0x88888888)):
        e(f"s_mov_b32 {s(sm)}, {val:#x}"); e(f"s_mov_b32 {s(sm+1)}, {val:#x}")
    e(f"s_mov_b32 {s(sStatEx)}, 0x00f0000f"); e(f"s_mov_b32 {s(sStatEx+1)}, 0xf0000f00")
    e(f"s_getreg_b32 {s(sXcc)}, hwreg(HW_REG_XCC_ID, 0, 4)")
    e(f"s_or_b32 {s(sXcc)}, {s(sXcc)}, 0x80")
    vWo, vWd, vGu = V.alloc(), V.alloc(), V.alloc()
    e(f"v_lshrrev_b32 {v(t0)}, 2, v0")
    e(f"v_xor_b32 {v(t1)}, {v(t0)}, {v(vG)}")
    e(f"v_and_b32 {v(t1)}, 1, {v(t1)}")
    e(f"v_and_b32 {v(t2)}, 3, v0")
    e(f"v_lshl_add_u32 {v(t1)}, {v(t1)}, 2, {v(t2)}")
    e(f"s_lshl_b32 {s(sT)}, {s(sJ)}, 7")
    e(f"v_lshl_add_u32 {v(t1)}, {v(t1)}, 4, {s(sT)}")
    e(f"v_lshl_add_u32 {v(vWo)}, {v(vRowP)}, 10, {v(t1)}")
    e(f"v_lshrrev_b32 {v(t3)}, 3, v0")
    e(f"s_lshl_b32 {s(sT)}, {s(sW)}, 3")
    e(f"v_add_u32 {v(t3)}, {s(sT)}, {v(t3)}")
    e(f"v_lshl_add_u32 {v(vWd)}, {v(t3)}, 10, {v(t1)}")
    e(f"s_lshl_b32 {s(sT)}, {s(sCp)}, 4")
    e(f"v_add_u32 {v(t0)}, {s(sT)}, {v(t0)}")
    e(f"v_mul_u32_u24 {v(t0)}, 2752, {v(t0)}")
    e(f"s_mul_i32 {s(sT)}, {s(sM)}, 192")
    e(f"v_lshl_add_u32 {v(t2)}, {v(t2)}, 4, {s(sT)}")
    e(f"v_add_u32 {v(vGu)}, {v(t0)}, {v(t2)}")
    V.rel(vRowP)
    vR2o, vR2x, vR3, vRsel = [V.alloc() for _ in range(4)]
    e(f"v_bfe_u32 {v(t0)}, v0, 2, 2")
    e(f"v_lshl_add_u32 {v(t0)}, {v(vH)}, 2, {v(t0)}")
    e(f"v_and_b32 {v(t1)}, 1, {v(vG)}")
    e(f"v_and_b32 {v(t2)}, 3, v0")
    e(f"v_lshl_add_u32 {v(t2)}, {v(t1)}, 2, {v(t2)}")
    e(f"v_lshlrev_b32 {v(t2)}, 3, {v(t2)}")
    e(f"v_lshl_add_u32 {v(vR3)}, {v(t0)}, 6, {v(t2)}")
    e(f"v_bfe_u32 {v(t3)}, v0, 3, 1")
    e(f"v_xor_b32 {v(t3)}, {s(sCp)}, {v(t3)}")
    e(f"v_lshl_add_u32 {v(t2)}, {v(t3)}, 6, {v(t2)}")
    e(f"v_lshl_add_u32 {v(t2)}, {v(t0)}, 7, {v(t2)}")
    e(f"s_lshl_b32 {s(sT)}, {s(sCp)}, 11")
    e(f"v_add_u32 {v(vR2o)}, {s(sT)}, {v(t2)}")
    e(f"v_xor_b32 {v(vR2x)}, 64, {v(vR2o)}")
    W2o = Win(vR2o, [0, 1, 2]); W2x = Win(vR2x, [0, 1, 2]); W3 = Win(vR3, [0, 1, 2])
    e(f"v_bfe_u32 {v(t0)}, v0, 2, 1")
    e(f"v_and_b32 {v(t2)}, 1, v0")
    e(f"v_cmp_eq_u32 vcc, {v(t0)}, {v(t1)}")
    e(f"v_cndmask_b32 {v(t2)}, 2, {v(t2)}, vcc")
    e(f"v_lshlrev_b32 {v(t2)}, 10, {v(t2)}")
    e(f"v_lshl_add_u32 {v(t2)}, {v(vH)}, 4, {v(t2)}")
    e(f"s_lshl_b32 {s(sT)}, {s(sCp)}, 5")
    e(f"s_add_u32 {s(sT)}, {s(sT)}, {MISC + 1024}")
    e(f"v_add_u32 {v(vRsel)}, {s(sT)}, {v(t2)}")

    wo_pg = {}; gu_pg = {}; wd_pg = {}
    def so(val):
        e(f"s_mov_b32 {s(sSo)}, {val}")
    def pf_wo(pg):
        def f():
            wo_pg[pg] = palloc(); so(pg * 32768); dma(wo_pg[pg], vWo, sWO, s(sSo), tag=f"wo{pg}")
        return f
    last_so = [None]
    def pf_gu(rr, nb):
        def f():
            p_ = palloc()
            if p_ == 0 and nb:
                free_pages.append(p_); p_ = palloc()
            gu_pg[rr, nb] = p_; so(rr * 32 * 2752); dma(p_, vGu, sGU, s(sSo), imm=64 * nb, tag=f"gu{rr}_{nb}")
        return f
    def pf_wd(sx):
        def f():
            wd_pg[sx] = palloc(); so(sx * 32768); dma(wd_pg[sx], vWd, sWD, s(sSo), tag=f"wd{sx}")
        return f
    NR3 = 6
    PFQ = [pf_wo(i) for i in range(16)]
    for rr in range(NR3): PFQ += [pf_gu(rr, nb) for nb in range(3)]
    n_stage1 = len(PFQ)
    for rr in range(NR3, 16): PFQ += [pf_gu(rr, nb) for nb in range(2)]
    n_stage2 = len(PFQ)
    for rr in range(NR3, 16): PFQ += [pf_gu(rr, 2)]
    n_stage3 = len(PFQ)
    S4 = [3*c for c in range(15)] + [3*c+1 for c in range(14)] + [3*c+2 for c in range(14)]
    PFQ += [pf_wd(x) for x in S4]
    pfi = [0]
    def pf(n, limit=None):
        limit = len(PFQ) if limit is None else limit
        L = PFQ[pfi[0]:min(pfi[0] + n, limit)]
        pfi[0] += len(L)
        return L

    accQ = [V.alloc(4) for _ in range(5)]; accK = [V.alloc(4) for _ in range(5)]; accV = [V.alloc(4) for _ in range(5)]
    gW, sWs, gH, sH = [V.alloc(4) for _ in range(4)]
    FA = [[V.alloc(4) for _ in range(6)] for _ in range(2)]
    FB = [[V.alloc(4) for _ in range(3)] for _ in range(2)]
    xres = V.alloc(8)
    def p1_reads(c, st):
        xp = XS[(c >> 1) & 1]; wp = WSL[c % 3]; cp = c & 1
        ra, rs = (vRA1, vRS1) if st else (vRA0, vRS0)
        L = []
        order = [("B", 0), ("A", 0), ("B", 1), ("B", 2), ("A", 1), ("A", 2), ("A", 3), ("A", 4), ("A", 5)]
        for kind, i in order:
            if kind == "A":
                if i < 5: L.append(lambda i=i: A.ds(f"ds_read_b128 {v(FA[st][i],4)}, {v(ra)} offset:{xp[i]*4096 + cp*2048}"))
                else: L.append(lambda: A.ds(f"ds_read_b128 {v(FA[st][5],4)}, {v(rs)} offset:{xp[0]*4096 + cp*2048}"))
            else:
                for ee in range(2):
                    L.append(lambda i=i, ee=ee: A.ds(f"ds_read_b64_tr_b16 {v(FB[st][i] + 2*ee, 2)}, {WB.at(wp[st*3+i]*4096 + ee*1024)}"))
        return L
    def p1_mfmas(c, st):
        first = (c == 0 and st == 0)
        L = []
        def mf(d, x, y): L.append(lambda: e(f"v_mfma_f32_16x16x32_bf16 {v(d,4)}, {v(x,4)}, {v(y,4)}, {'0' if first else v(d,4)}"))
        mf(gW, FA[st][5], FA[st][5]); mf(sWs, vOnes, FA[st][5]); mf(gH, FA[st][4], FA[st][4]); mf(sH, vOnes, FA[st][4])
        for b in (4, 0, 1, 2, 3):
            mf(accQ[b], FB[st][0], FA[st][b]); mf(accK[b], FB[st][1], FA[st][b]); mf(accV[b], FA[st][b], FB[st][2])
        return L
    def wbar_calc():
        L = []
        def f0():
            A.wait(vm="wbrow")
            e(f"v_dot2_f32_bf16 {v(t0)}, {v(vWb)}, {v(vOnes)}, 0")
            e(f"v_dot2_f32_bf16 {v(t1)}, {v(vWb+1)}, {v(vOnes)}, 0")
            e(f"v_dot2_f32_bf16 {v(t2)}, {v(vWb+2)}, {v(vOnes)}, 0")
            e(f"v_dot2_f32_bf16 {v(t3)}, {v(vWb+3)}, {v(vOnes)}, 0")
            e("s_nop 2")
        L.append(f0)
        L.append(lambda: (e(f"v_add_f32 {v(t0)}, {v(t0)}, {v(t1)}"), e(f"v_add_f32 {v(t2)}, {v(t2)}, {v(t3)}")))
        L.append(lambda: e(f"v_add_f32 {v(t0)}, {v(t0)}, {v(t2)}"))
        for sh in (8, 4, 2, 1):
            L.append(lambda sh=sh: e(f"v_add_f32_dpp {v(t0)}, {v(t0)}, {v(t0)} row_ror:{sh} row_mask:0xf bank_mask:0xf"))
        for pl in ("16", "32"):
            L.append(lambda: e(f"v_mov_b32 {v(t1)}, {v(t0)}"))
            L.append(lambda pl=pl: e(f"v_permlane{pl}_swap_b32 {v(t0)}, {v(t1)}"))
            L.append(lambda: e(f"v_add_f32 {v(t0)}, {v(t0)}, {v(t1)}"))
        def f1():
            e(f"v_mul_f32 {v(t0)}, {f2u(1/512):#x}, {v(t0)}")
            e(f"v_cvt_pk_bf16_f32 {v(t1)}, {v(t0)}, {v(t0)}")
            e(f"v_and_b32 {v(t2)}, 0xffff0000, {v(t1)}")
            e(f"v_sub_f32 {v(t2)}, {v(t0)}, {v(t2)}")
            e(f"v_cvt_pk_bf16_f32 {v(t2)}, {v(t2)}, {v(t2)}")
            e(f"v_cmp_eq_u32 vcc, 0, v0")
            e(f"s_lshl1_add_u32 {s(sT)}, s2, {s(sHb)}")
            e(f"s_lshl1_add_u32 {s(sT)}, {s(sT)}, {WS_WB}")
            e(f"v_cndmask_b32 {v(t1)}, {v(t2)}, {v(t1)}, vcc")
            e(f"v_lshl_add_u32 {v(t2)}, v0, 10, {s(sT)}")
            e("s_mov_b64 exec, 3")
            A.vm(f"buffer_store_short {v(t1)}, {v(t2)}, {s(sWS,4)}, 0 offen sc1", "wbst")
            e("s_mov_b64 exec, -1")
        L.append(f1)
        return L
    def register():
        e(f"s_lshl4_add_u32 {s(sT)}, {s(sSB)}, {s(sM)}")
        e(f"s_cmp_eq_u32 {s(sW)}, 0")
        e(f"s_cselect_b32 {s(sT)}, {s(sT)}, 0x1000")
        e(f"v_mov_b32 {v(t0)}, {s(sT)}")
        e(f"v_mov_b32 {v(t1)}, {s(sXcc)}")
        e("s_mov_b64 exec, 1")
        A.vm(f"buffer_store_byte {v(t1)}, {v(t0)}, {s(sDBG,4)}, 0 offen sc1", "reg")
        e("s_mov_b64 exec, -1")
    def touch_late():
        L = []
        def f(srd, r, mask):
            e(f"s_mov_b64 exec, {mask}")
            A.vm(f"buffer_load_dword {v(ttch+r)}, {v(vTb)}, {s(srd,4)}, 0 offen", "tl")
            e("s_mov_b64 exec, -1")
        L.append(lambda: f(sWD, 1, 0x7ff))
        def g():
            e(f"s_lshl1_add_u32 {s(sT)}, s2, {s(sCp)}")
            e(f"s_mul_i32 {s(sT)}, {s(sT)}, {22*128}")
            e(f"v_lshl_add_u32 {v(vTb)}, v0, 7, {s(sT)}")
            f(sGU, 2, 0x3fffff)
        L.append(g)
        return L
    vReg = V.alloc(); vL4 = V.alloc()
    e(f"v_lshlrev_b32 {v(vL4)}, 2, v0")
    deferred = []
    nd = P["ndefer"]
    for c in range(8):
        tags = [f"W{c}", f"X{c>>1}"]
        if c == 3: tags += ["clr", "wbst"]
        A.wait(vm=tags, lg="all")
        e("s_barrier")
        if c in (0, 1, 4, 7): stamp(f"c{c}")
        if c == 6: free_pages += WSL[2] + XS[0]
        if c == 7: free_pages += WSL[0]
        ex = []
        if c + 2 < 8:
            if c % 2 == 0: ex += x_dmas(c // 2 + 1)
            ex += w_dmas(c + 2)
        if c == 6: ex += pf(P["pf_c6"], n_stage1)
        if c == 7: ex += pf(P["pf_c7"], n_stage1)
        if c == 3: ex = [register] + ex
        if c == 2 and P["touch_late"]: ex = ex + touch_late()
        if c == 7: ex = [lambda: A.vm(f"buffer_load_dword {v(vReg)}, {v(vL4)}, {s(sDBG,4)}, 0 offen sc1", "regld")] + ex
        n1 = len(ex) // 3
        r0 = p1_reads(c, 0)
        seq = merge(deferred, r0) if deferred else r0
        for f in seq: f()
        for f in ex[:1]: f()
        A.wait(lg="all")
        m0_ = p1_mfmas(c, 0)
        fill = p1_reads(c, 1)
        if c == 0:
            for q in range(4):
                def f(q=q):
                    if q: e(f"v_xor_b32 {v(t0)}, {q*16}, {v(vRX)}")
                    A.ds(f"ds_read_b64 {v(xres+2*q,2)}, {v(t0 if q else vRX)}")
                fill.append(f)
        h = (len(ex) + 1) // 2
        seq = merge(merge(m0_, fill, 0, 13), ex[1:h])
        for f in seq: f()
        A.wait(lg="all")
        m1_ = p1_mfmas(c, 1)
        k = len(m1_) - (nd if c < 7 else 0)
        fill2 = ex[h:]
        if c == 0: fill2 = merge(wbar_calc(), fill2)
        for f in merge(m1_[:k], fill2): f()
        deferred = m1_[k:]
    V.rel(vRX); V.rel(vWb, 4)
    for st in range(2):
        for r in FA[st] + FB[st]: V.rel(r, 4)
    for r in (vRA0, vRA1, vRS0, vRS1, vX0, vX1, vXH, vWq): V.rel(r)
    WB.rel()
    stamp("p1mf")

    epi_pf = pf(P["pf_epi"], n_stage1 - 11)
    def tick(n=1):
        for _ in range(n):
            if epi_pf: epi_pf.pop(0)()
    vSt = V.alloc()
    e(f"s_lshl_b32 {s(sT)}, {s(sW)}, 6")
    e(f"s_add_u32 {s(sT)}, {s(sT)}, {MISC}")
    e(f"v_lshl_add_u32 {v(t3)}, {v(vI)}, 2, {s(sT)}")
    e(f"v_mov_b32 {v(t2)}, {MISC}")
    e(f"v_lshl_add_u32 {v(vSt)}, {v(vI)}, 2, {v(t2)}")
    for (G_, S_, addr, off) in ((gW, sWs, t3, 0), (gH, sH, vSt, 64)):
        e(f"v_cndmask_b32 {v(G_)}, {v(G_)}, {v(G_+1)}, {s(sM1,2)}")
        e(f"v_cndmask_b32 {v(G_+2)}, {v(G_+2)}, {v(G_+3)}, {s(sM3,2)}")
        e(f"v_mul_f32 {v(S_)}, {f2u(-1/512):#x}, {v(S_)}")
        e(f"s_or_b64 vcc, {s(sM2,2)}, {s(sM3,2)}")
        e(f"v_cndmask_b32 {v(G_)}, {v(G_)}, {v(G_+2)}, vcc")
        e(f"v_mul_f32 {v(G_+1)}, {v(S_)}, {v(S_)}")
        e(f"v_mul_f32 {v(G_)}, {f2u(1/512):#x}, {v(G_)}")
        e(f"v_sub_f32 {v(G_)}, {v(G_)}, {v(G_+1)}")
        e(f"v_max_f32 {v(G_)}, 0, {v(G_)}")
        e(f"v_add_f32 {v(G_)}, {f2u(1e-5):#x}, {v(G_)}")
        e(f"v_rsq_f32 {v(G_)}, {v(G_)}")
        e(f"s_mov_b64 exec, {s(sStatEx,2)}")
        A.ds(f"ds_write2_b32 {v(addr)}, {v(S_)}, {v(G_)} offset0:{off} offset1:{128+off}")
        e("s_mov_b64 exec, -1")
    csQ, csK = V.alloc(4), V.alloc(4); csV = V.alloc(2)
    for r in range(4):
        e(f"v_mov_b32_dpp {v(csQ+r)}, {v(accQ[4]+r)} row_newbcast:0 row_mask:0xf bank_mask:0xf")
        e(f"v_mov_b32_dpp {v(csK+r)}, {v(accK[4]+r)} row_newbcast:0 row_mask:0xf bank_mask:0xf")
    e(f"v_mov_b32 {v(csV)}, {v(accV[4])}")
    e(f"v_mov_b32 {v(csV+1)}, {v(accV[4])}")
    A.wait(lg="all")
    e("s_barrier")
    free_pages += WSL[1] + XS[1]
    e(f"v_permlane16_swap_b32 {v(csV)}, {v(csV+1)}")
    stA = [V.alloc(2) for _ in range(5)]; stM = [V.alloc(4) for _ in range(5)]; stR = [V.alloc(4) for _ in range(5)]
    vMx = V.alloc()
    e(f"v_lshl_add_u32 {v(t3)}, {v(vG)}, 4, {v(t2)}")
    for b in (4, 0, 1, 2, 3): A.ds(f"ds_read2_b32 {v(stA[b],2)}, {v(vSt)} offset0:{b*16} offset1:{128+b*16}", f"sa{b}")
    e(f"v_mov_b32 {v(csV+1)}, {v(csV)}")
    for b in (4, 0, 1, 2, 3):
        A.ds(f"ds_read_b128 {v(stM[b],4)}, {v(t3)} offset:{b*64}", f"sm{b}")
        A.ds(f"ds_read_b128 {v(stR[b],4)}, {v(t3)} offset:{512 + b*64}", f"sr{b}")
    e(f"v_permlane32_swap_b32 {v(csV)}, {v(csV+1)}")
    tick()
    pQ = [V.alloc(2) for _ in range(4)]; pK = [V.alloc(2) for _ in range(5)]
    pVb = V.alloc(10, 2)
    pV = {1: pVb, 0: pVb + 2, 4: pVb + 4, 2: pVb + 6, 3: pVb + 8}
    cE = [V.alloc() for _ in range(4)]
    CEXP = 0.25 * math.log2(math.e)
    for b in (4, 0, 1, 2, 3):
        A.wait(lg=f"sa{b}")
        for hq in range(2):
            e(f"v_pk_fma_f32 {v(accK[b]+2*hq,2)}, {v(stA[b],2)}, {v(csK+2*hq,2)}, {v(accK[b]+2*hq,2)} op_sel_hi:[0,1,1]")
        if b < 4:
            for hq in range(2):
                e(f"v_pk_fma_f32 {v(accQ[b]+2*hq,2)}, {v(stA[b],2)}, {v(csQ+2*hq,2)}, {v(accQ[b]+2*hq,2)} op_sel_hi:[0,1,1]")
        for hq in range(2):
            e(f"v_pk_mul_f32 {v(accK[b]+2*hq,2)}, {v(accK[b]+2*hq,2)}, {v(stA[b],2)} op_sel:[0,1] op_sel_hi:[1,1]")
        if b < 4:
            for hq in range(2): e(f"v_cvt_pk_bf16_f32 {v(pQ[b]+hq)}, {v(accQ[b]+2*hq)}, {v(accQ[b]+2*hq+1)}")
        for hq in range(2): e(f"v_cvt_pk_bf16_f32 {v(pK[b]+hq)}, {v(accK[b]+2*hq)}, {v(accK[b]+2*hq+1)}")
        if b < 4: e(f"v_mul_f32 {v(cE[b])}, {f2u(CEXP):#x}, {v(stA[b]+1)}")
        if b in (0, 2): tick()
    prev = {0: (4, mH0), 1: (0, mP), 2: (4, mH1), 3: (2, mP)}
    for b in range(4):
        e(f"v_mfma_f32_16x16x16_bf16 {v(accQ[b],4)}, {v(pK[b],2)}, {v(pQ[b],2)}, {v(mC,4)}")
        e(f"v_mfma_f32_16x16x16_bf16 {v(accK[b],4)}, {v(pK[prev[b][0]],2)}, {v(pQ[b],2)}, {v(prev[b][1],4)}")
    e(f"s_lshl_b32 {s(sT)}, {s(sHb)}, 7")
    e(f"s_add_u32 {s(sT)}, {s(sT)}, {MISC}")
    e(f"v_and_b32 {v(t0)}, 31, v0")
    e(f"v_lshl_add_u32 {v(t0)}, {v(t0)}, 2, {s(sT)}")
    for b in (4, 0, 1, 2, 3):
        A.wait(lg=[f"sm{b}", f"sr{b}"])
        if b == 4: A.ds(f"ds_read_b32 {v(vMx)}, {v(t0)}", "mx")
        for hq in range(2):
            e(f"v_pk_fma_f32 {v(accV[b]+2*hq,2)}, {v(stM[b]+2*hq,2)}, {v(csV,2)}, {v(accV[b]+2*hq,2)} op_sel_hi:[1,0,1]")
        for hq in range(2):
            e(f"v_pk_mul_f32 {v(accV[b]+2*hq,2)}, {v(accV[b]+2*hq,2)}, {v(stR[b]+2*hq,2)}")
        for hq in range(2): e(f"v_cvt_pk_bf16_f32 {v(pV[b]+hq)}, {v(accV[b]+2*hq)}, {v(accV[b]+2*hq+1)}")
        if b == 1: tick()
    for b in range(5): V.rel(stM[b], 4); V.rel(stR[b], 4); V.rel(stA[b], 2)
    V.rel(csQ, 4); V.rel(csK, 4); V.rel(csV, 2)
    mx = [V.alloc(2) for _ in range(4)]
    for b in range(4):
        for r in range(4): e(f"v_max_f32 {v(accQ[b]+r)}, {v(accQ[b]+r)}, {v(accK[b]+r)}")
        e(f"v_max3_f32 {v(mx[b])}, {v(accQ[b])}, {v(accQ[b]+1)}, {v(accQ[b]+2)}")
        e(f"v_max_f32 {v(mx[b])}, {v(mx[b])}, {v(accQ[b]+3)}")
        e(f"v_mov_b32 {v(mx[b]+1)}, {v(mx[b])}")
    tick()
    for b in range(4): e(f"v_permlane16_swap_b32 {v(mx[b])}, {v(mx[b]+1)}")
    for b in range(4): e(f"v_max_f32 {v(mx[b])}, {v(mx[b])}, {v(mx[b]+1)}")
    for b in range(4): e(f"v_mov_b32 {v(mx[b]+1)}, {v(mx[b])}")
    for b in range(4): e(f"v_permlane32_swap_b32 {v(mx[b])}, {v(mx[b]+1)}")
    for b in range(4): e(f"v_max_f32 {v(mx[b])}, {v(mx[b])}, {v(mx[b]+1)}")
    tick()
    pP = [V.alloc(4) for _ in range(4)]
    for b in range(4):
        e(f"v_mul_f32 {v(mx[b]+1)}, {v(mx[b])}, {v(cE[b])}")
        e(f"v_mov_b32 {v(mx[b])}, {v(cE[b])}")
        for hq in range(2):
            e(f"v_pk_fma_f32 {v(accQ[b]+2*hq,2)}, {v(accQ[b]+2*hq,2)}, {v(mx[b],2)}, {v(mx[b],2)} op_sel:[0,0,1] op_sel_hi:[1,0,1] neg_lo:[0,0,1] neg_hi:[0,0,1]")
        for r in range(4): e(f"v_exp_f32 {v(accQ[b]+r)}, {v(accQ[b]+r)}")
        cur, prv = (0, 2) if b < 2 else (2, 0)
        for hq in range(2): e(f"v_cvt_pk_bf16_f32 {v(mx[b]+hq)}, {v(accQ[b]+2*hq)}, {v(accQ[b]+2*hq+1)}")
        for hq in range(2): e(f"v_and_b32 {v(pP[b]+cur+hq)}, {v(mx[b]+hq)}, {v(mA+hq)}")
        for hq in range(2): e(f"v_xor_b32 {v(pP[b]+prv+hq)}, {v(mx[b]+hq)}, {v(pP[b]+cur+hq)}")
        e(f"v_mfma_f32_16x16x16_bf16 {v(accK[b],4)}, {v(vOnes,2)}, {v(mx[b],2)}, 0")
        va = pV[b] if b < 2 else pV[b] - 2
        e(f"v_mfma_f32_16x16x32_bf16 {v(accV[b],4)}, {v(va,4)}, {v(pP[b],4)}, 0")
        if b in (0, 2): tick()
    Lr, Lr2 = A.label("regpoll"), A.label("regok")
    A.wait(vm="regld")
    e(f"v_and_b32 {v(t0)}, 0x80808080, {v(vReg)}")
    e(f"v_cmp_ne_u32 vcc, 0x80808080, {v(t0)}")
    e(f"s_cbranch_vccnz {Lr}")
    e(f"{Lr2}:")
    A.tail.append(f"""{Lr}:
        s_mov_b32 {s(sSpin)}, 0
        {Lr}_l:
        s_add_u32 {s(sSpin)}, {s(sSpin)}, 1
        s_cmp_gt_u32 {s(sSpin)}, SPIN_MAX
        s_cbranch_scc1 L_end
        s_sleep 4
        buffer_load_dword {v(vReg)}, {v(vL4)}, {s(sDBG,4)}, 0 offen sc1
        s_waitcnt vmcnt(0)
        v_and_b32 {v(t0)}, 0x80808080, {v(vReg)}
        v_cmp_ne_u32 vcc, 0x80808080, {v(t0)}
        s_cbranch_vccnz {Lr}_l
        s_branch {Lr2}""")
    e(f"s_mul_i32 {s(sT)}, {s(sXcc)}, 0x01010101")
    e(f"v_cmp_ne_u32 vcc, {s(sT)}, {v(vReg)}")
    e(f"s_lshl_b32 {s(sT)}, {s(sSB)}, 2")
    e(f"s_lshr_b64 {s(sT2,2)}, vcc, {s(sT)}")
    e(f"s_and_b32 {s(sSlow)}, {s(sT2)}, 15")
    if P["force_slow"]: e(f"s_mov_b32 {s(sSlow)}, 1")
    e(f"s_cmp_lt_u32 {s(sW)}, 2")
    e(f"s_cselect_b32 {s(sT)}, {s(sW1K)}, {OOB - WS_WB}")
    e(f"s_add_u32 {s(sT)}, {s(sT)}, {WS_WB}")
    e(f"v_add_u32 {v(t1)}, {s(sT)}, {v(vL16)}")
    e(f"s_min_u32 {s(sTb)}, {s(sW1K)}, 2048")
    e(f"s_add_u32 m0, {s(sTb)}, {MISC + 1024}")
    A.vm(f"buffer_load_dwordx4 {v(t1)}, {s(sWS,4)}, 0 offen sc1 lds", "wbar")
    e(f"s_add_u32 {s(sT)}, {s(sBase)}, {WS_FL}")
    e(f"v_lshl_add_u32 {v(t0)}, v0, 7, {s(sT)}")
    e("s_mov_b64 exec, 0xfffff")
    A.vm(f"buffer_load_dword {v(ttch+3)}, {v(t0)}, {s(sWS,4)}, 0 offen sc1", "flw")
    e("s_mov_b64 exec, -1")
    vOst = V.alloc()
    e(f"s_lshl2_add_u32 {s(sT)}, {s(sRB)}, {s(sHb)}")
    e(f"s_lshl_b32 {s(sT)}, {s(sT)}, 4")
    e(f"s_lshl1_add_u32 {s(sTb)}, {s(sJ)}, {s(sCp)}")
    e(f"s_add_u32 {s(sT)}, {s(sT)}, {s(sTb)}")
    e(f"s_lshl_b32 {s(sT)}, {s(sT)}, 10")
    e(f"s_add_u32 {s(sT)}, {s(sT)}, {s(sBase)}")
    e(f"s_add_u32 {s(sTb)}, {s(sT)}, 32768")
    for b in range(4): e(f"v_rcp_f32 {v(accK[b])}, {v(accK[b])}")
    for p_ in range(2):
        for bb in range(2):
            b = 2*p_ + bb
            for hq in range(2):
                e(f"v_pk_mul_f32 {v(accV[b]+2*hq,2)}, {v(accV[b]+2*hq,2)}, {v(accK[b],2)} op_sel_hi:[1,0]")
            for hq in range(2): e(f"v_cvt_pk_bf16_f32 {v(pP[p_]+2*bb+hq)}, {v(accV[b]+2*hq)}, {v(accV[b]+2*hq+1)}")
    for p_ in range(2):
        for hq in range(2): e(f"v_permlane16_swap_b32 {v(pP[p_]+hq)}, {v(pP[p_]+2+hq)}")
        A.vm(f"buffer_store_dwordx4 {v(pP[p_],4)}, {v(vL16)}, {s(sWS,4)}, {s(sTb if p_ else sT)} offen", "ost")
    V.rel(vOst)
    while epi_pf: tick()
    stamp("p1end")

    def signal(vaddr, imm, tags):
        Ls, Lb = A.label("slowsig"), A.label("sigback")
        A.wait(vm=tags)
        e(f"s_cmp_lg_u32 {s(sSlow)}, 0")
        e(f"s_cbranch_scc1 {Ls}")
        e("s_mov_b64 exec, 1")
        A.vm(f"buffer_store_dword {v(vOne)}, {v(vaddr)}, {s(sWS,4)}, 0 offen offset:{imm}", "flag")
        e("s_mov_b64 exec, -1")
        e(f"{Lb}:")
        A.tail.append(f"""{Ls}:
            s_waitcnt vmcnt(0)
            buffer_wbl2 sc1
            s_waitcnt vmcnt(0)
            s_mov_b64 exec, 1
            buffer_store_dword {v(vOne)}, {v(vaddr)}, {s(sWS,4)}, 0 offen offset:{imm} sc1
            s_mov_b64 exec, -1
            s_waitcnt vmcnt(0)
            s_branch {Lb}""")
    vPoll = V.alloc()
    def poll_issue(vaddr, imm, tag):
        A.vm(f"buffer_load_dword {v(vPoll)}, {v(vaddr)}, {s(sWS,4)}, 0 offen offset:{imm} sc1", tag)
    def poll_check(vaddr, imm, tag):
        Lp, Lb = A.label("poll"), A.label("pollback")
        A.wait(vm=tag)
        e(f"v_cmp_ne_u32 vcc, 1, {v(vPoll)}")
        e(f"s_or_b32 {s(sSpin)}, vcc_lo, {s(sSlow)}")
        e(f"s_cbranch_scc1 {Lp}")
        e(f"{Lb}:")
        A.tail.append(f"""{Lp}:
            s_mov_b32 {s(sSpin)}, 0
            {Lp}_l:
            buffer_load_dword {v(vPoll)}, {v(vaddr)}, {s(sWS,4)}, 0 offen offset:{imm} sc1
            s_add_u32 {s(sSpin)}, {s(sSpin)}, 1
            s_cmp_gt_u32 {s(sSpin)}, SPIN_MAX
            s_cbranch_scc1 L_end
            s_waitcnt vmcnt(0)
            v_cmp_ne_u32 vcc, 1, {v(vPoll)}
            s_cbranch_vccnz {Lp}_l
            s_cmp_lg_u32 {s(sSlow)}, 0
            s_cbranch_scc0 {Lb}
            buffer_inv sc1
            s_waitcnt vmcnt(0)
            s_branch {Lb}""")

    for r in accQ + accK + accV + [gW, sWs, gH, sH, mC, mP, mH0, mH1] + pP: V.rel(r, 4)
    for r in pQ + pK + mx + [mA]: V.rel(r, 2)
    V.rel(pVb, 10)
    for r in cE + [vSt, vReg, vL4]: V.rel(r)

    if pfi[0] < 16:
        for f in pf(16 - pfi[0]): f()
    for f in pf(P["pf_h1a"], n_stage1): f()
    accO, accX = V.alloc(16), V.alloc(16)
    accM = V.alloc(4)
    for q in range(8):
        e(f"v_lshlrev_b32 {v(accO+2*q)}, 16, {v(xres+q)}")
        e(f"v_and_b32 {v(accO+2*q+1)}, 0xffff0000, {v(xres+q)}")
    V.rel(xres, 8)
    signal(vFp12, 0, "ost")
    A.wait(vm=["wbar"] + [f"wo{i}" for i in range(16)], lg="all")
    e("s_barrier")
    poll_issue(vFc1, 0, "poll1")
    for f in pf(P["pf_h1b"], n_stage1): f()
    NB = 3
    F2 = [[V.alloc(4) for _ in range(3)] for _ in range(NB)]
    def rd2(page, buf, tag, selstep=None):
        L = []
        for k_, Wn in ((0, W2o), (1, W2x)):
            for ee in range(2):
                L.append(lambda k_=k_, Wn=Wn, ee=ee: A.ds(f"ds_read_b64_tr_b16 {v(F2[buf][k_]+2*ee,2)}, {Wn.at(page()*4096 + ee*1024)}", tag))
        if selstep is not None:
            L.append(lambda: A.ds(f"ds_read_b128 {v(F2[buf][2],4)}, {v(vRsel)} offset:{selstep*64}", tag))
        return L
    for st in range(2):
        for f in rd2(lambda: wo_pg[st], st, f"r2_{st}", st): f()
    vAld = V.alloc()
    e(f"s_lshl1_add_u32 {s(sT)}, {s(sRB)}, {s(sHb)}")
    e(f"s_lshl1_add_u32 {s(sT)}, {s(sT)}, {s(sCp)}")
    e(f"s_lshl_b32 {s(sT)}, {s(sT)}, 14")
    e(f"s_add_u32 {s(sT)}, {s(sT)}, {s(sBase)}")
    e(f"v_add_u32 {v(vAld)}, {s(sT)}, {v(vL16)}")
    sAo = S.alloc()
    def ld_frag(areg, off, tag):
        def f():
            if off % 4096 == 0 or ld_frag.last != off // 4096:
                e(f"s_mov_b32 {s(sAo)}, {off // 4096 * 4096}")
            ld_frag.last = off // 4096
            A.vm(f"buffer_load_dwordx4 {a_(areg,4)}, {v(vAld)}, {s(sWS,4)}, {s(sAo)} offen offset:{off % 4096} sc1", tag)
        return f
    ld_frag.last = None
    poll_check(vFc1, 0, "poll1")
    stamp("h1")
    OA = 128
    ldq = [ld_frag(OA + 4*i, WS_O + i*1024, f"o{i}") for i in range(16)]
    LEAD = 6
    for f in ldq[:LEAD]: f()
    p2pf = pf(P["pf_p2"], n_stage1)
    for st in range(16):
        b = st % NB
        A.wait(vm=f"o{st}", lg=f"r2_{st}")
        m = [lambda: e(f"v_mfma_f32_32x32x16_bf16 {v(accO,16)}, {v(F2[b][0],4)}, {a_(OA+4*st,4)}, {v(accO,16)}"),
             lambda: e(f"v_mfma_f32_32x32x16_bf16 {v(accX,16)}, {v(F2[b][1],4)}, {a_(OA+4*st,4)}, {'0' if st == 0 else v(accX,16)}"),
             lambda: e(f"v_mfma_f32_16x16x32_bf16 {v(accM,4)}, {v(F2[b][2],4)}, {a_(OA+4*st,4)}, {'0' if st == 0 else v(accM,4)}")]
        if st == 15: m = [m[1], m[2], m[0]]
        fill = []
        if st + LEAD < 16: fill.append(ldq[st + LEAD])
        elif p2pf: fill.append(p2pf.pop(0))
        if st + 2 < 16: fill += rd2(lambda st=st: wo_pg[st+2], (st+2) % NB, f"r2_{st+2}", st+2)
        for f in merge(m, fill, 0, 2): f()
    for f in p2pf: f()
    stamp("p2mf")
    scr = [palloc() for _ in range(4)]
    vSw, vSr = V.alloc(), V.alloc()
    def exchange(extra):
        e(f"v_add_u32 {v(vSw)}, {s(sW1K)}, {v(vL16)}")
        e(f"v_xor_b32 {v(vSr)}, 2048, {v(vSw)}")
        wins = sorted({p_ * 4096 >> 16 for p_ in scr})
        Ww = Win(vSw, wins); Wr = Win(vSr, wins)
        for q in range(4):
            ad = Ww.at(scr[q]*4096).split(" ")
            A.ds(f"ds_write_b128 {ad[0]}, {v(accX+4*q,4)} {ad[1]}")
        if extra:
            e(f"v_add_f32 {v(accM)}, {v(accM)}, {v(accM+1)}")
            e(f"s_lshl_b32 {s(sT)}, {s(sW)}, 8")
            e(f"s_add_u32 {s(sT)}, {s(sT)}, {MISC}")
            e(f"v_lshl_add_u32 {v(t0)}, v0, 2, {s(sT)}")
            e(f"v_xor_b32 {v(t1)}, 512, {v(t0)}")
            A.ds(f"ds_write_b32 {v(t0)}, {v(accM)}")
        A.wait(lg="all")
        e("s_barrier")
        if extra: A.ds(f"ds_read_b32 {v(accM+1)}, {v(t1)}", "xm")
        for q in range(4): A.ds(f"ds_read_b128 {v(accX+4*q,4)}, {Wr.at(scr[q]*4096)}", f"xq{q}")
        for w_, r in list(Ww.r.items()) + list(Wr.r.items()):
            if w_: V.rel(r)
    exchange(True)
    free_pages += [wo_pg[i] for i in range(16)]
    h2pf = pf(P["pf_h2a"], n_stage2)
    A.wait(lg=["xm", "mx"])
    e(f"v_sub_f32 {v(accM)}, {v(vMx)}, {v(accM)}")
    e(f"v_sub_f32 {v(accM)}, {v(accM)}, {v(accM+1)}")
    pk = V.alloc(8)
    ssq = V.alloc(2)
    e(f"s_lshl1_add_u32 {s(sT)}, {s(sRB)}, {s(sHb)}")
    e(f"s_lshl1_add_u32 {s(sTb)}, {s(sJ)}, {s(sCp)}")
    e(f"s_lshl4_add_u32 {s(sSo)}, {s(sT)}, {s(sTb)}")
    e(f"s_lshl_b32 {s(sSo)}, {s(sSo)}, 11")
    e(f"s_add_u32 {s(sSo)}, {s(sSo)}, {s(sBase)}")
    e(f"s_add_u32 {s(sSo)}, {s(sSo)}, {WS_HC}")
    for q in range(4):
        A.wait(lg=f"xq{q}")
        for hq in range(2):
            r = 4*q + 2*hq
            e(f"v_pk_add_f32 {v(accO+r,2)}, {v(accO+r,2)}, {v(accX+r,2)}")
        for hq in range(2):
            r = 4*q + 2*hq
            e(f"v_pk_add_f32 {v(accX+r,2)}, {v(accO+r,2)}, {v(accM,2)} op_sel_hi:[1,0]")
        for hq in range(2):
            r = 4*q + 2*hq
            e(f"v_cvt_pk_bf16_f32 {v(pk+2*q+hq)}, {v(accX+r)}, {v(accX+r+1)}")
        if q % 2 == 1:
            A.vm(f"buffer_store_dwordx4 {v(pk+4*(q//2),4)}, {v(vL16)}, {s(sWS,4)}, {s(sSo)} offen offset:{1024*(q//2)}", "hst")
    for r in range(0, 16, 2):
        if r == 0: e(f"v_pk_mul_f32 {v(ssq,2)}, {v(accX,2)}, {v(accX,2)}")
        else: e(f"v_pk_fma_f32 {v(ssq,2)}, {v(accX+r,2)}, {v(accX+r,2)}, {v(ssq,2)}")
    e(f"v_add_f32 {v(ssq)}, {v(ssq)}, {v(ssq+1)}")
    e(f"s_lshl_b32 {s(sT)}, {s(sT)}, 11")
    e(f"v_mov_b32 {v(ssq+1)}, {v(ssq)}")
    e(f"s_lshr_b32 {s(sSo)}, {s(sTb)}, 2")
    e(f"s_lshl_b32 {s(sSo)}, {s(sSo)}, 9")
    e(f"v_permlane32_swap_b32 {v(ssq)}, {v(ssq+1)}")
    e(f"s_add_u32 {s(sT)}, {s(sT)}, {s(sSo)}")
    e(f"s_and_b32 {s(sTb)}, {s(sTb)}, 3")
    e(f"s_lshl2_add_u32 {s(sT)}, {s(sTb)}, {s(sT)}")
    e(f"v_add_f32 {v(ssq)}, {v(ssq)}, {v(ssq+1)}")
    e(f"s_add_u32 {s(sT)}, {s(sT)}, {s(sBase)}")
    e(f"s_add_u32 {s(sT)}, {s(sT)}, {WS_ST}")
    e("s_mov_b32 exec_hi, 0")
    A.vm(f"buffer_store_dword {v(ssq)}, {v(vL16)}, {s(sWS,4)}, {s(sT)} offen", "hst")
    e("s_mov_b32 exec_hi, -1")
    for f in h2pf: f()
    stamp("p2end")
    V.rel(vMx); V.rel(accM, 4); V.rel(vRsel)

    signal(vFp12, 512, "hst")
    V.rel(pk, 8); V.rel(ssq, 2)
    landed = set()
    def checkpoint(tags):
        tags = [t for t in tags if t not in landed]
        if tags:
            i = A.last_vm(tags)
            A.wait(vm=tags)
            landed.update(t for t in A.vmq[:i+1])
        e("s_barrier")
    A.wait(lg="all")
    checkpoint([f"gu{rr}_0" for rr in range(min(NR3, 4))])
    free_pages += scr
    poll_issue(vFc2, 512, "poll2")
    for f in pf(P["pf_h2b"], n_stage2): f()
    acc3 = [[V.alloc(16), V.alloc(16)] for _ in range(3)]
    NB3 = 3
    F3 = [[F2[b][0], F2[b][1]] for b in range(NB3)]
    def rd3(nb, ks, tag):
        buf = (nb * 32 + ks) % NB3
        L = []
        for mat in range(2):
            for ee in range(2):
                L.append(lambda mat=mat, ee=ee: A.ds(f"ds_read_b64_tr_b16 {v(F3[buf][mat]+2*ee,2)}, {W3.at(gu_pg[ks//2, nb]*4096 + (ks&1)*2048 + mat*1024 + ee*512)}", tag))
        return L
    for ks in range(2):
        for f in rd3(0, ks, f"r3_0_{ks}"): f()
    e(f"s_lshl_b32 {s(sT)}, {s(sW)}, 15")
    e(f"s_add_u32 {s(sT)}, {s(sT)}, {s(sBase)}")
    e(f"v_add_u32 {v(vAld)}, {s(sT)}, {v(vL16)}")
    e(f"s_lshl_b32 {s(sT)}, {s(sW)}, 11")
    e(f"s_add_u32 {s(sT)}, {s(sT)}, {s(sBase)}")
    e(f"s_add_u32 {s(sT)}, {s(sT)}, {WS_ST}")
    poll_check(vFc2, 512, "poll2")
    stamp("h2")
    st8 = V.alloc(8)
    ld_frag.last = None
    ldq = [ld_frag(4*i, WS_HC + i*1024, f"h{i}") for i in range(32)]
    for f in ldq[:LEAD]: f()
    k1, k2, vv = V.alloc(2), V.alloc(2), V.alloc(2)
    C1 = 2 * math.sqrt(2 / math.pi); C2 = C1 * 0.044715; L2E = math.log2(math.e)
    def stats_ld():
        for q in range(2): A.vm(f"buffer_load_dwordx4 {v(st8+4*q,4)}, {v(vL16)}, {s(sWS,4)}, {s(sT)} offen offset:{1024*q} sc1", "st2")
    def stats_calc():
        L = [lambda: A.wait(vm="st2")]
        for q in range(4): L.append(lambda q=q: e(f"v_add_f32 {v(st8+q)}, {v(st8+q)}, {v(st8+4+q)}"))
        L.append(lambda: e(f"v_add_f32 {v(st8)}, {v(st8)}, {v(st8+1)}"))
        L.append(lambda: e(f"v_add_f32 {v(st8+2)}, {v(st8+2)}, {v(st8+3)}"))
        L.append(lambda: e(f"v_add_f32 {v(st8)}, {v(st8)}, {v(st8+2)}"))
        L.append(lambda: e(f"v_mov_b32 {v(st8+1)}, {v(st8)}"))
        L.append(lambda: e(f"v_mov_b32 {v(st8+2)}, {f2u(1e-5):#x}"))
        L.append(lambda: e(f"v_permlane32_swap_b32 {v(st8)}, {v(st8+1)}"))
        L.append(lambda: e(f"v_add_f32 {v(st8)}, {v(st8)}, {v(st8+1)}"))
        L.append(lambda: e(f"v_fmamk_f32 {v(vv)}, {v(st8)}, {f2u(1/512):#x}, {v(st8+2)}"))
        L.append(lambda: e(f"v_rsq_f32 {v(st8)}, {v(vv)}"))
        L.append(lambda: e(f"v_rcp_f32 {v(st8+1)}, {v(vv)}"))
        L.append(lambda: e(f"v_mul_f32 {v(k1)}, {f2u(-C1*L2E):#x}, {v(st8)}"))
        L.append(lambda: e(f"v_mul_f32 {v(k2)}, {f2u(0.044715):#x}, {v(st8+1)}"))
        L.append(lambda: e(f"v_mul_f32 {v(k2)}, {v(k2)}, {v(k1)}"))
        return L
    tmpE = V.alloc(8); pkA = V.alloc(8)
    sAct = S.alloc()
    def act_store(nb, kh):
        e(f"s_add_u32 {s(sT)}, {s(sAct)}, {(kh*48 + nb*16)*1024}")
        A.vm(f"buffer_store_dwordx4 {v(pkA+4*kh,4)}, {v(vL16)}, {s(sWS,4)}, {s(sT)} offen", f"ast{nb}")
    def epi3(nb, packed):
        G_, U_ = acc3[nb]
        L = []
        for r0 in range(0, 16, 4):
            T = tmpE + (r0 & 4)
            if packed:
                for hq in (0, 2): L.append(lambda r=r0+hq, t=T+hq: e(f"v_pk_mul_f32 {v(t,2)}, {v(G_+r,2)}, {v(G_+r,2)}"))
                for hq in (0, 2): L.append(lambda t=T+hq: e(f"v_pk_fma_f32 {v(t,2)}, {v(t,2)}, {v(k2,2)}, {v(k1,2)} op_sel_hi:[1,0,0]"))
                for hq in (0, 2): L.append(lambda r=r0+hq, t=T+hq: e(f"v_pk_mul_f32 {v(t,2)}, {v(t,2)}, {v(G_+r,2)}"))
                for i in range(4): L.append(lambda t=T+i: e(f"v_exp_f32 {v(t)}, {v(t)}"))
                for hq in (0, 2): L.append(lambda r=r0+hq: e(f"v_pk_mul_f32 {v(U_+r,2)}, {v(U_+r,2)}, {v(G_+r,2)}"))
                for hq in (0, 2): L.append(lambda t=T+hq: e(f"v_pk_fma_f32 {v(t,2)}, {v(t,2)}, {v(vv,2)}, {v(vv,2)} op_sel_hi:[1,0,0]"))
                for i in range(4): L.append(lambda t=T+i: e(f"v_rcp_f32 {v(t)}, {v(t)}"))
                for hq in (0, 2): L.append(lambda r=r0+hq, t=T+hq: e(f"v_pk_mul_f32 {v(U_+r,2)}, {v(U_+r,2)}, {v(t,2)}"))
            else:
                for i in range(4): L.append(lambda r=r0+i, t=T+i: e(f"v_mul_f32 {v(t)}, {v(G_+r)}, {v(G_+r)}"))
                for i in range(4): L.append(lambda t=T+i: e(f"v_fma_f32 {v(t)}, {v(t)}, {v(k2)}, {v(k1)}"))
                for i in range(4):
                    L.append(lambda r=r0+i, t=T+i: e(f"v_mul_f32 {v(t)}, {v(t)}, {v(G_+r)}"))
                for i in range(4):
                    L.append(lambda t=T+i: e(f"v_exp_f32 {v(t)}, {v(t)}"))
                    L.append(lambda r=r0+i: e(f"v_mul_f32 {v(U_+r)}, {v(U_+r)}, {v(G_+r)}"))
                for i in range(4): L.append(lambda t=T+i: e(f"v_fma_f32 {v(t)}, {v(t)}, {v(vv)}, {v(vv)}"))
                for i in range(4): L.append(lambda t=T+i: e(f"v_rcp_f32 {v(t)}, {v(t)}"))
                for i in range(4): L.append(lambda r=r0+i, t=T+i: e(f"v_mul_f32 {v(U_+r)}, {v(U_+r)}, {v(t)}"))
            for hq in (0, 2): L.append(lambda r=r0+hq: e(f"v_cvt_pk_bf16_f32 {v(pkA + r//2)}, {v(U_+r)}, {v(U_+r+1)}"))
            if r0 in (4, 12): L.append(lambda kh=r0//8: act_store(nb, kh))
        return L
    def areg4(pos): return 128 + 4*pos if pos < 32 else 4*(pos - 32)
    def a4_off(pos):
        sx = S4[pos]; return WS_ACT + ((sx % 3)*16 + sx // 3) * 1024
    def set_a4_addr():
        e(f"s_lshl1_add_u32 {s(sT)}, {s(sRB)}, {s(sHb)}")
        e(f"s_lshl1_add_u32 {s(sT)}, {s(sT)}, {s(sCp)}")
        e(f"s_mul_i32 {s(sT)}, {s(sT)}, {48*1024}")
        e(f"s_add_u32 {s(sT)}, {s(sT)}, {s(sBase)}")
        e(f"v_add_u32 {v(vAld)}, {s(sT)}, {v(vL16)}")
        ld_frag.last = None
    ld4 = [ld_frag(areg4(p_), a4_off(p_), f"a{p_}") for p_ in range(43)]
    def rd4(pos): return rd2(lambda: wd_pg[S4[pos]], pos % NB, f"r4_{pos}")

    for nb in range(3):
        G_, U_ = acc3[nb]
        valu = []
        if nb > 0: valu = epi3(nb - 1, False)
        e0, e1 = 1, 25
        for ks in range(32):
            pre = []; fill = []
            if nb == 0:
                if ks % 4 == 2 and ks + 2 < 32:
                    need_t = [f"gu{rr}_0" for rr in ((ks+2)//2, (ks+2)//2 + 1)]
                    if any(t not in landed for t in need_t):
                        while any(t not in A.vmq for t in need_t): pf(1)[0]()
                        checkpoint(need_t)
                if ks == 30:
                    need_t = [f"gu{rr}_1" for rr in range(16)]
                    while any(t not in A.vmq for t in need_t): pf(1)[0]()
                    if any(t not in landed for t in need_t): checkpoint(need_t)
            if nb > 0 and ks == 0:
                checkpoint([])
                free_pages += [gu_pg[rr, nb-1] for rr in range(16)]
            if nb == 1 and ks == 30:
                need_t = [f"gu{rr}_2" for rr in range(16)]
                if any(t not in landed for t in need_t): checkpoint(need_t)
            if nb == 2 and ks == 16:
                checkpoint([])
                free_pages += [gu_pg[rr, 2] for rr in range(8)]
            A.wait(vm=f"h{ks}" if nb == 0 else None, lg=f"r3_{nb}_{ks}")
            buf = (nb * 32 + ks) % NB3
            m = [lambda mat=mat, D=D: e(f"v_mfma_f32_32x32x16_bf16 {v(D,16)}, {v(F3[buf][mat],4)}, {a_(4*ks,4)}, {'0' if ks == 0 else v(D,16)}")
                 for mat, D in ((0, G_), (1, U_))]
            if nb == 0:
                if ks + LEAD < 32: fill.append(ldq[ks + LEAD])
                if ks == 32 - LEAD: fill.append(stats_ld)
                if free_pages and pfi[0] < n_stage2 and ks % 1 == 0: fill += pf(1, n_stage2)
                if ks == 31:
                    fill += [lambda: e(f"s_mul_i32 {s(sAct)}, {s(sW)}, {96*1024}"),
                             lambda: e(f"s_lshl_b32 {s(sT)}, {s(sM)}, 10"),
                             lambda: e(f"s_add_u32 {s(sAct)}, {s(sAct)}, {s(sT)}"),
                             lambda: e(f"s_add_u32 {s(sAct)}, {s(sAct)}, {s(sBase)}"),
                             lambda: e(f"s_add_u32 {s(sAct)}, {s(sAct)}, {WS_ACT}")]
            else:
                if nb == 1 and ks == 0: valu = stats_calc() + valu
                if len(free_pages) > 0 and not (nb == 2 and 8 <= ks < 24): fill += pf(1)
                if nb == 2:
                    if ks == 2: fill += [set_a4_addr, lambda: poll_issue(vFc3, 1024, "poll30")]
                    if ks == 8: pre.append(lambda: poll_check(vFc3, 1024, "poll30"))
                    if 8 <= ks < 23: fill.append(ld4[ks - 8])
                if ks == 28: pre.append(lambda nb=nb: signal(vFp3, 1024 + 512*(nb-1), f"ast{nb-1}"))
            nxt = nb * 32 + ks + 2
            if nxt < 96: fill += rd3(nxt // 32, nxt % 32, f"r3_{nxt//32}_{nxt%32}")
            if valu and ks >= e0:
                n = -(-len(valu) // max(1, e1 - ks)) if ks < e1 else len(valu)
                fill = merge(fill, valu[:n]) if fill else valu[:n]
                valu = valu[n:]
            for f in pre: f()
            for f in merge(m, fill): f()
        if nb < 2: stamp(f"pass{nb}")
    stamp("p3mf")
    checkpoint([f"wd{S4[p_]}" for p_ in range(2)])
    free_pages += [gu_pg[rr, 2] for rr in range(8, 16)]
    poll_issue(vFc3, 1024 + 512, "poll31")
    ep = epi3(2, True)
    hlf = len(ep) // 3
    for f in ep[:hlf]: f()
    poll_check(vFc3, 1024 + 512, "poll31")
    for f in merge(ep[hlf:], ld4[15:19]): f()
    for f in rd4(0) + rd4(1): f()
    stamp("p3end")
    V.rel(st8, 8); V.rel(tmpE, 8)

    q4 = ld4[19:29]
    scr = None
    for pos in range(43):
        pre = []; fill = []
        if pos % 4 == 0 and pos + 2 < 43:
            need_t = [f"wd{S4[x]}" for x in range(pos + 2, min(pos + 6, 43))]
            rel = pos in (8, 16)
            while any(t not in A.vmq for t in need_t): pf(1)[0]()
            if rel or any(t not in landed for t in need_t):
                checkpoint(need_t)
                if rel: free_pages += [wd_pg[S4[x]] for x in range(pos - 8, pos)]
        if pos == 5: pre.append(lambda: signal(vFp3, 1024 + 1024, "ast2"))
        if pos == 14: fill.append(lambda: poll_issue(vFc3, 1024 + 1024, "poll32"))
        if pos == 19:
            pre.append(lambda: poll_check(vFc3, 1024 + 1024, "poll32")); q4 = q4 + ld4[29:]
        if q4:
            fill.append(q4.pop(0))
            if pos >= 19 and pos < 24 and q4: fill.append(q4.pop(0))
        if free_pages and pfi[0] < len(PFQ): fill += pf(1)
        for f in pre: f()
        A.wait(vm=f"a{pos}", lg=f"r4_{pos}")
        b = pos % NB
        m = [lambda: e(f"v_mfma_f32_32x32x16_bf16 {v(accX,16)}, {v(F2[b][1],4)}, {a_(areg4(pos),4)}, {'0' if pos == 0 else v(accX,16)}"),
             lambda: e(f"v_mfma_f32_32x32x16_bf16 {v(accO,16)}, {v(F2[b][0],4)}, {a_(areg4(pos),4)}, {v(accO,16)}")]
        if pos + 2 < 43: fill += rd4(pos + 2)
        for f in merge(m, fill): f()
    assert pfi[0] == len(PFQ) and not q4
    stamp("p4mf")
    scr = [palloc() for _ in range(4)]
    exchange(False)
    vO = V.alloc()
    e(f"v_and_b32 {v(t0)}, 31, v0")
    e(f"s_add_u32 {s(sT)}, {s(sR0)}, {s(sHb)}")
    e(f"v_lshl_add_u32 {v(t0)}, {v(t0)}, 1, {s(sT)}")
    e(f"s_lshl1_add_u32 {s(sT)}, {s(sJ)}, {s(sCp)}")
    e(f"s_lshl_b32 {s(sT)}, {s(sT)}, 6")
    e(f"v_lshl_add_u32 {v(t1)}, {v(vH)}, 4, {s(sT)}")
    e(f"v_lshl_add_u32 {v(vO)}, {v(t0)}, 10, {v(t1)}")
    for q in range(4):
        A.wait(lg=f"xq{q}")
        for hq in range(2):
            r = 4*q + 2*hq
            e(f"v_pk_add_f32 {v(accO+r,2)}, {v(accO+r,2)}, {v(accX+r,2)}")
        for hq in range(2):
            r = 4*q + 2*hq
            e(f"v_cvt_pk_bf16_f32 {v(pkA+2*q+hq)}, {v(accO+r)}, {v(accO+r+1)}")
        if q % 2 == 1:
            u = q // 2
            for hq in range(2): e(f"v_permlane32_swap_b32 {v(pkA+4*u+hq)}, {v(pkA+4*u+2+hq)}")
            A.vm(f"buffer_store_dwordx4 {v(pkA+4*u,4)}, {v(vO)}, {s(sOUT,4)}, 0 offen offset:{32*u}" + (" sc1" if P["outsc1"] else ""), "out")
    if P["stamps"]:
        A.wait(vm="all")
        stamp("end")
        e(f"s_lshl2_add_u32 {s(sT)}, s2, {s(sW)}")
        e(f"s_lshl_b32 {s(sT)}, {s(sT)}, 7")
        e(f"s_add_u32 {s(sT)}, {s(sT)}, {WS_STAMP}")
        e(f"s_memrealtime {s(sT2,2)}")
        e("s_waitcnt lgkmcnt(0)")
        e(f"v_mov_b32 {v(t0)}, 0")
        e("s_mov_b64 exec, 1")
        for i in range(nst[0]):
            e(f"s_sub_u32 {s(sTb)}, {s(sStamp+i)}, {s(sStamp)}")
            e(f"v_mov_b32 {v(t1)}, {s(sTb)}")
            e(f"buffer_store_dword {v(t1)}, {v(t0)}, {s(sWS,4)}, {s(sT)} offen offset:{4*i}")
        e(f"v_mov_b32 {v(t1)}, {s(sT2)}")
        e(f"buffer_store_dword {v(t1)}, {v(t0)}, {s(sWS,4)}, {s(sT)} offen offset:120")
        e(f"v_mov_b32 {v(t1)}, {s(sSlow)}")
        e(f"buffer_store_dword {v(t1)}, {v(t0)}, {s(sWS,4)}, {s(sT)} offen offset:124")
    body, tail = A.text()
    hdr = open("cdna_kernels/" + NAME + ".s.ref").read().split("; Override launch")[0]
    out = hdr + "; @launch grid=(256,1,1) block=(256,1,1) lds=163840\n"
    out += f"""; generated by gen/gen.py  params: {P}
.amdgcn_target "amdgcn-amd-amdhsa--gfx950"
.set SPIN_MAX, 400000
.set CODE_SPAN, {P["span"]}
.text
.globl {NAME}_kernel
.p2align 8
.type {NAME}_kernel,@function
{NAME}_kernel:
{body}
L_end:
    s_endpgm
{tail}
L_code_end:
    s_endpgm
.section .rodata,"a"
.p2align 6
.amdhsa_kernel {NAME}_kernel
  .amdhsa_next_free_vgpr 512
  .amdhsa_next_free_sgpr 102
  .amdhsa_accum_offset 256
  .amdhsa_group_segment_fixed_size 0
  .amdhsa_kernarg_size 80
  .amdhsa_user_sgpr_count 2
  .amdhsa_user_sgpr_kernarg_segment_ptr 1
  .amdhsa_system_sgpr_workgroup_id_x 1
  .amdhsa_float_denorm_mode_32 3
.end_amdhsa_kernel
"""
    info = dict(vhi=V.hi, shi=S.hi, npad=A.npad, nins=len(A.ins), stamps=stamp_names)
    return out, info

def code_bytes(txt):
    import subprocess, tempfile, os, re
    d = tempfile.mkdtemp()
    open(d + "/a.s", "w").write(txt)
    r = subprocess.run(["clang", "-x", "assembler", "-target", "amdgcn-amd-amdhsa", "-mcpu=gfx950", "-c", d + "/a.s", "-o", d + "/a.o"], capture_output=True, text=True)
    assert r.returncode == 0, r.stderr[:3000]
    o = subprocess.run(["llvm-readelf", "-s", d + "/a.o"], capture_output=True, text=True).stdout
    return int(re.search(r"([0-9a-f]{16})\s+\d+\s+\w+\s+\w+\s+\w+\s+\d+\s+L_code_end", o).group(1), 16)

def gen2(**kw):
    txt, info = gen(**kw)
    n = code_bytes(txt)
    kw = dict(kw); kw["span"] = n - 256
    txt, info = gen(**kw)
    info["bytes"] = n
    return txt, info

if __name__ == "__main__":
    kw = {}
    outp = "cdna_kernels/" + NAME + ".s"
    for a in sys.argv[1:]:
        k, val = a.split("=")
        if k == "out": outp = val
        else: kw[k] = int(val)
    txt, info = gen2(**kw)
    open(outp, "w").write(txt)
    print(info)
```
